```python
import torch

def _softmax(x, axis=-1):
    return torch.softmax(x, dim=axis)
def _gelu(x):
    return torch.nn.functional.gelu(x, approximate="tanh")
def _silu(x):
    return torch.nn.functional.silu(x)
def _sigmoid(x):
    return torch.sigmoid(x)
def _layernorm(x, axis=-1, eps=1e-5):
    m = x.mean(dim=axis, keepdim=True)
    v = x.var(dim=axis, keepdim=True, unbiased=False)
    return (x - m) / torch.sqrt(v + eps)
def _scatter_add(tgt, idx, src, axis=0):
    return tgt.clone().index_add_(axis, idx, src)
def _segment_sum(src, seg, n):
    out = torch.zeros((n,) + src.shape[1:], dtype=src.dtype)
    return out.index_add_(0, seg, src)
def _pad(x, pw):
    flat = tuple(v for pair in reversed(pw) for v in pair)
    return torch.nn.functional.pad(x, flat)

kernel_name = 'sequential_preLN__sliding_block_cached__geglu_ffn__decode'

def setup_inputs():

    _w = (lambda a: (lambda t: t.to(torch.bfloat16) if t.is_floating_point() else t)(torch.as_tensor(a)))
    def _A_setup():
        B, Sq, D = 4, 1, 576
        Hq, Hkv, Sk, Dh = 32, 16, 8192, 128
        assert Hq % Hkv == 0, (Hq, Hkv)
        return {
            "x": _w((lambda *s: torch.randn(*s, dtype=torch.bfloat16) * 0.05)(B, Sq, D)),
            "k_cache": _w((lambda *s: torch.randn(*s, dtype=torch.bfloat16) * 3.2)(B, Hkv, Sk, Dh)),
            "v_cache": _w((lambda *s: torch.randn(*s, dtype=torch.bfloat16) * 0.4)(B, Hkv, Sk, Dh)),
            "wq": _w((lambda *s: torch.randn(*s, dtype=torch.bfloat16) * 3.2)(D, Hq * Dh) * (D ** -0.5)),
            "wo": _w((lambda *s: torch.randn(*s, dtype=torch.bfloat16) * 0.4)(Hq * Dh, D) * ((Hq * Dh) ** -0.5)),
        }
    _A_in = _A_setup()

    def _B_setup():
        B, S, D, F = 4, 1, 576, 4608
        return {
            "x": _w((lambda *s: torch.randn(*s, dtype=torch.bfloat16) * 0.05)(B, S, D)),
            "w_gate": _w((lambda *s: torch.randn(*s, dtype=torch.bfloat16) * 0.05)(D, F)),
            "w_up": _w((lambda *s: torch.randn(*s, dtype=torch.bfloat16) * 0.05)(D, F)),
            "w_down": _w((lambda *s: torch.randn(*s, dtype=torch.bfloat16) * 0.05)(F, D)),
        }
    _B_in = _B_setup()

    return {
        "A_x": _A_in["x"],
        "A_k_cache": _A_in["k_cache"],
        "A_v_cache": _A_in["v_cache"],
        "A_wq": _A_in["wq"],
        "A_wo": _A_in["wo"],
        "B_x": _B_in["x"],
        "B_w_gate": _B_in["w_gate"],
        "B_w_up": _B_in["w_up"],
        "B_w_down": _B_in["w_down"],
    }

def reference(A_x, A_k_cache, A_v_cache, A_wq, A_wo, B_x, B_w_gate, B_w_up, B_w_down):
    def _A_ref(x, k_cache, v_cache, wq, wo):
        B, Sq, D = x.shape
        Hq, Dh = 32, 128
        Hkv, Sk = k_cache.shape[1], k_cache.shape[2]
        W = min(4096, max(256, Sk // 4))
        rep = Hq // Hkv
        q = (lambda x, *d: x.permute(*d))((x @ wq).reshape(B, Sq, Hq, Dh), 0, 2, 1, 3)
        k = (lambda x, n, axis: torch.repeat_interleave(x, n, dim=axis))(k_cache[:, :, Sk - W:, :], rep, axis=1)
        v = (lambda x, n, axis: torch.repeat_interleave(x, n, dim=axis))(v_cache[:, :, Sk - W:, :], rep, axis=1)
        scores = torch.einsum("bhqd,bhkd->bhqk", q, k) * (Dh ** -0.5)
        p = _softmax(scores, axis=-1)
        o = torch.einsum("bhqk,bhkd->bhqd", p, v)
        return (lambda x, *d: x.permute(*d))(o, 0, 2, 1, 3).reshape(B, Sq, Hq * Dh) @ wo

    def _B_ref(x, w_gate, w_up, w_down):
        return (_gelu(x @ w_gate) * (x @ w_up)) @ w_down

    x = A_x
    h = x + _A_ref(_layernorm(x, axis=-1), A_k_cache, A_v_cache, A_wq, A_wo)
    h2 = h + _B_ref(_layernorm(h, axis=-1), B_w_gate, B_w_up, B_w_down)
    return h2
```

```python
NAME = "sequential_preLN__sliding_block_cached__geglu_ffn__decode"
class A:
    def __init__(self): self.l = []
    def __call__(self, s=""):
        for x in s.split("\n"): self.l.append("    " + x.strip() if x.strip() and not x.strip().endswith(":") else x.strip())
    def text(self): return "\n".join(self.l) + "\n"

def wrap(body, grid, block, lds, vgpr=256, agpr=0, sgpr=102, header=""):
    k = NAME + "_kernel"
    accum = (vgpr + 3) // 4 * 4
    return f"""{header}; @launch grid=({grid},1,1) block=({block},1,1) lds={lds}
.amdgcn_target "amdgcn-amd-amdhsa--gfx950"
.text
.globl {k}
.p2align 8
.type {k},@function
{k}:
{body}
.section .rodata,"a"
.p2align 6
.amdhsa_kernel {k}
  .amdhsa_next_free_vgpr {accum + agpr if agpr else vgpr}
  .amdhsa_next_free_sgpr {sgpr}
  .amdhsa_accum_offset {accum}
  .amdhsa_group_segment_fixed_size 0
  .amdhsa_kernarg_size 96
  .amdhsa_user_sgpr_count 2
  .amdhsa_user_sgpr_kernarg_segment_ptr 1
  .amdhsa_system_sgpr_workgroup_id_x 1
.end_amdhsa_kernel
"""
```

```python
import re
TRANS = ("v_exp_f32","v_log_f32","v_rcp_f32","v_rsq_f32","v_sqrt_f32","v_sin_f32","v_cos_f32","v_rcp_iflag_f32")
def regs(tok):
    tok = tok.strip().lstrip("-").replace("abs(", "").replace("|", "").rstrip(")")
    m = re.fullmatch(r"([vas])(\d+)", tok)
    if m: return {(m.group(1), int(m.group(2)))}
    m = re.fullmatch(r"([vas])\[(\d+):(\d+)\]", tok)
    if m: return {(m.group(1), i) for i in range(int(m.group(2)), int(m.group(3)) + 1)}
    if tok == "vcc": return {("s", "vcc")}
    if tok in ("vcc_lo", "vcc_hi"): return {("s", "vcc")}
    if tok == "m0": return {("s", "m0")}
    if tok == "exec": return {("s", "exec")}
    return set()
class I:
    def __init__(self, line):
        self.line = line
        s = line.split(";")[0].strip()
        self.op = s.split()[0] if s else ""
        rest = s[len(self.op):].strip()
        rest = re.sub(r"(quad_perm|op_sel|op_sel_hi|neg_lo|neg_hi):\[[^\]]*\]", lambda m: m.group(1) + ":x", rest)
        ops = [o.strip() for o in rest.split(",")] if rest else []
        if ops:
            last = ops[-1].split()
            self.mods = " ".join(last[1:]); ops[-1] = last[0] if last else ""
        else: self.mods = ""
        self.ops = ops
        op = self.op
        self.label = s.endswith(":") ; self.dir = s.startswith(".")
        self.real = bool(s) and not self.label and not self.dir
        self.mfma = op.startswith("v_mfma") or op.startswith("v_smfmac")
        self.valu = op.startswith("v_") and not self.mfma
        self.vmem = op.startswith(("buffer_", "global_", "flat_"))
        self.ds = op.startswith("ds_")
        self.salu = op.startswith("s_")
        self.dpp = "_dpp" in op or any(k in self.mods for k in ("quad_perm", "row_", "wave_"))
        self.perm = op.startswith("v_permlane")
        self.rl = op.startswith(("v_readlane", "v_readfirstlane", "v_writelane"))
        self.trans = op.replace("_e32", "").replace("_e64", "") in TRANS
        self.w = set(); self.r = set()
        R = [regs(o) for o in ops]
        if self.mfma:
            self.w = R[0]; self.r = R[1] | R[2] | R[3]; self.ab = R[1] | R[2]; self.c = R[3]
            self.passes = 8 if "32x32" in op else (2 if "4x4" in op else 4)
            if op.endswith("_f32") and op.count("f32") == 2: self.passes = 16 if "32x32" in op else 8
        elif self.valu:
            if self.perm: self.w = R[0] | R[1]; self.r = R[0] | R[1]
            elif op.startswith("v_cmp"): self.w = R[0]; self.r = set().union(*R[1:])
            elif "_co_" in op: self.w = R[0] | R[1]; self.r = set().union(*R[2:])
            else:
                self.w = R[0] if R else set(); self.r = set().union(*R[1:]) if len(R) > 1 else set()
                if op.startswith(("v_fmac", "v_dot2c", "v_writelane")) or self.dpp or "PRESERVE" in self.mods: self.r |= R[0]
                if op.startswith("v_cndmask") and len(ops) == 3: self.r |= {("s", "vcc")}
        elif self.vmem:
            lds = "lds" in self.mods.split() or "_lds_" in op
            self.ldsdma = lds
            if "load" in op and not lds: self.w = R[0]; self.r = set().union(*R[1:])
            else: self.r = set().union(*R) if R else set()
            if lds: self.r |= {("s", "m0")}
            self.wide_store = ("store" in op) and op.endswith(("x3", "x4"))
            if self.wide_store: self.sdata = R[0] if op.startswith("buffer") else R[1]
        elif self.ds:
            if "read" in op or "permute" in op or "swizzle" in op or "rtn" in op: self.w = R[0]; self.r = set().union(*R[1:])
            else: self.r = set().union(*R)
        elif self.salu:
            if op.startswith(("s_cmp", "s_cbranch", "s_branch", "s_waitcnt", "s_nop", "s_barrier", "s_endpgm", "s_sleep", "s_setprio", "s_bitcmp")): self.r = set().union(*R) if R else set()
            else: self.w = R[0] if R else set(); self.r = set().union(*R[1:]) if len(R) > 1 else set()
    def states(self):
        if self.op == "s_nop": return int(self.ops[0], 0) + 1
        return 1
def vv(s): return {x for x in s if x[0] in "va"}
def ss(s): return {x for x in s if x[0] == "s"}
def need(p, c):
    n = 0
    if p.valu:
        wv = vv(p.w); ws = ss(p.w)
        if c.mfma and wv & c.r: n = max(n, 2)
        if c.valu and c.dpp and wv & c.r: n = max(n, 2)
        if c.valu and c.perm and wv & c.r: n = max(n, 2)
        if c.valu and c.rl and wv & c.r: n = max(n, 1)
        if p.trans and (c.valu or c.mfma) and not c.trans and wv & c.r: n = max(n, 1)
        if p.trans and c.trans and wv & c.r: n = max(n, 1)
        if ws and c.vmem and ws & c.r: n = max(n, 5)
        if ws and c.valu and ws & c.r: n = max(n, 4 if c.rl else 2)
        if ws and c.salu and ws & c.r and not c.op.startswith("s_cbranch"): n = max(n, 1)
        if ("sdwa" in p.op or "op_sel" in p.mods) and c.valu and wv & (c.r | c.w): n = max(n, 1)
    if p.mfma:
        t = {2: 5, 4: 8, 8: 12, 16: 20}[p.passes]
        if c.mfma:
            if p.w & c.ab: n = max(n, t)
            if p.w & c.c and (p.w != c.c or p.passes != c.passes): n = max(n, {2: 4, 4: 6, 8: 10, 16: 18}[p.passes])
            if p.w == c.c and p.passes == 2: n = max(n, 2)
            if p.w & c.w and not (p.w & c.c): n = max(n, t)
        elif (c.valu or c.vmem or c.ds) and p.w & (c.r | c.w): n = max(n, t)
        if c.valu and p.c & c.w: n = max(n, {2: 1, 4: 3, 8: 7, 16: 15}[p.passes])
    if p.salu and ("s", "m0") in p.w and c.vmem and getattr(c, "ldsdma", False): n = max(n, 1)
    if p.vmem and getattr(p, "wide_store", False) and p.sdata & c.w: n = max(n, 2 if c.valu or c.mfma else 1)
    return n
def fix(text, verbose=False):
    out = []; hist = []
    added = 0
    for line in text.split("\n"):
        c = I(line)
        if not c.real: out.append(line); continue
        d = 0; pad = 0
        for p in reversed(hist):
            if d >= 20: break
            pad = max(pad, need(p, c) - d)
            d += p.states()
        if pad > 0:
            k = pad
            while k > 0:
                n = min(k, 16); nl = f"    s_nop {n-1}"
                out.append(nl); hist.append(I(nl)); k -= n
            added += pad
        out.append(line); hist.append(c)
        if c.op in ("s_branch", "s_endpgm"): hist = []
        hist = hist[-24:]
    if verbose: print("hazard pass: added", added, "wait states")
    return "\n".join(out)
```

```python
import sys
from asmgen import A, wrap, NAME
import hazard

QP, OP, STT, P1, HH, P3, STAMPS, WS_SZ = 0x0, 0x40000, 0x80000, 0x90000, 0xE0000, 0xF0000, 0x300000, 0x400000
L_W, L_WQ, L_LN, L_Q, L_P, L_ST, L_OR, L_OB, L_GU, L_END = 0, 110592, 131072, 135936, 136704, 141312, 141376, 145472, 146752, 147776
LN_STR, Q_STR, OB_STR = 1216, 384, 320
LOG2E = 0x3FB8AA3B
SCALE = 0x3DB504F3
SPIN = 1 << 16

sKV, sWS, sW1, sW2, sW3, sX, sOUT = "s[28:31]", "s[32:35]", "s[36:39]", "s[40:43]", "s[44:47]", "s[48:51]", "s[52:55]"
S_U, S_X, S_Y, S_HKV, S_I, S_B, S_S, S_TAG, S_ROT, S_CNT = "s56", "s57", "s58", "s59", "s60", "s61", "s62", "s63", "s80", "s81"
S_FIDX, S_HEAD, S_CBO, S_RID, S_WAVE = "s82", "s83", "s84", "s85", "s86"
S_MLO, S_MHI = "s87", "s88"
T0, T1, T2, T3 = "s90", "s91", "s92", "s93"
SV = "s[94:95]"
SM = "s[96:97]"


def gen(calib=0, dbg=0, D=10, stamps=False, nt="nt", late=0, DW=10, prefetch=True):
    a = A()
    nstamp = [0]

    def stamp(i):
        if stamps:
            a(f"s_memrealtime s[{64+2*i}:{65+2*i}]\ns_waitcnt lgkmcnt(0)")

    def srd(name, lo, off, size):
        n = int(name[2:name.index(":")])
        if off is None:
            a(f"s_mov_b32 s{n}, s{lo}\ns_mov_b32 s{n+1}, s{lo+1}")
        else:
            a(f"s_add_u32 s{n}, s{lo}, {off}\ns_addc_u32 s{n+1}, s{lo+1}, 0")
        a(f"s_mov_b32 s{n+2}, {size}\ns_mov_b32 s{n+3}, 0x20000")

    def tag4(r):
        for k in range(4):
            a(f"v_and_or_b32 v{r+k}, v{r+k}, {S_MLO}, v31")

    def red_rows(r, out):
        a(f"v_permlane32_swap_b32 v{r}, v{r+2}\nv_permlane32_swap_b32 v{r+1}, v{r+3}")
        a(f"v_add_f32 v{r}, v{r}, v{r+2}\nv_add_f32 v{r+1}, v{r+1}, v{r+3}")
        a(f"v_permlane16_swap_b32 v{r}, v{r+1}")
        a(f"v_add_f32 v{out}, v{r}, v{r+1}")

    def all_rows(op, r, t):
        a(f"v_mov_b32 v{t}, v{r}\nv_permlane16_swap_b32 v{t}, v{r}\n{op} v{r}, v{r}, v{t}")
        a(f"v_mov_b32 v{t}, v{r}\nv_permlane32_swap_b32 v{t}, v{r}\n{op} v{r}, v{r}, v{t}")

    def dpp(op, d, s0, s1, ctl, rm="0xf", bm="0xf"):
        a(f"{op}_dpp v{d}, v{s0}, v{s1} {ctl} row_mask:{rm} bank_mask:{bm}")

    def wave_sum(r, t):
        for ctl in ("quad_perm:[1,0,3,2]", "quad_perm:[2,3,0,1]", "row_ror:4", "row_ror:8"):
            dpp("v_add_f32", r, r, r, ctl)
        all_rows("v_add_f32", r, t)

    def rnd(d, s):
        a(f"v_cvt_pk_bf16_f32 v{d}, v{s}, v{s}\nv_and_b32 v{d}, {S_MHI}, v{d}")

    def layernorm(e, t, vaddr8, vaddr2):
        a(f"v_add_f32 v{t}, v{e}, v{e+1}\nv_add_f32 v{t+1}, v{e+2}, v{e+3}\nv_add_f32 v{t+2}, v{e+4}, v{e+5}\nv_add_f32 v{t+3}, v{e+6}, v{e+7}")
        a(f"v_add_f32 v{t}, v{t}, v{t+1}\nv_add_f32 v{t+2}, v{t+2}, v{t+3}\nv_add_f32 v{t}, v{t}, v{e+8}\nv_add_f32 v{t}, v{t}, v{t+2}")
        wave_sum(t, t + 1)
        a(f"v_mul_f32 v{t}, 0x3AE38E39, v{t}")
        a(f"v_sub_f32 v{t+2}, v{e}, v{t}\nv_mul_f32 v{t+1}, v{t+2}, v{t+2}")
        for k in range(1, 9):
            a(f"v_sub_f32 v{t+2+(k&1)}, v{e+k}, v{t}\nv_fmac_f32 v{t+1}, v{t+2+(k&1)}, v{t+2+(k&1)}")
        rnd(t, t)
        wave_sum(t + 1, t + 2)
        for k in range(9):
            a(f"v_sub_f32 v{e+k}, v{e+k}, v{t}")
        a(f"v_mul_f32 v{t+1}, 0x3AE38E39, v{t+1}")
        rnd(t + 1, t + 1)
        a(f"v_add_f32 v{t+1}, 0x3727C5AC, v{t+1}")
        rnd(t + 1, t + 1)
        a(f"v_sqrt_f32 v{t+1}, v{t+1}")
        for k in range(0, 8, 2):
            a(f"v_cvt_pk_bf16_f32 v{e+k}, v{e+k}, v{e+k+1}")
        a(f"v_cvt_pk_bf16_f32 v{e+8}, v{e+8}, v{e+8}")
        rnd(t + 1, t + 1)
        a(f"v_rcp_f32 v{t+1}, v{t+1}")
        for k in range(0, 8, 2):
            a(f"v_and_b32 v{e+k+1}, {S_MHI}, v{e+k}\nv_lshlrev_b32 v{e+k}, 16, v{e+k}")
        a(f"v_and_b32 v{e+8}, {S_MHI}, v{e+8}")
        for k in range(9):
            a(f"v_mul_f32 v{e+k}, v{e+k}, v{t+1}")
        a(f"v_cvt_pk_bf16_f32 v{e}, v{e}, v{e+1}\nv_cvt_pk_bf16_f32 v{e+1}, v{e+2}, v{e+3}")
        a(f"v_cvt_pk_bf16_f32 v{e+2}, v{e+4}, v{e+5}\nv_cvt_pk_bf16_f32 v{e+3}, v{e+6}, v{e+7}\nv_cvt_pk_bf16_f32 v{e+4}, v{e+8}, v{e+8}")
        a(f"ds_write_b64 v{vaddr8}, v[{e}:{e+1}]\nds_write_b64 v{vaddr8}, v[{e+2}:{e+3}] offset:512\nds_write_b16 v{vaddr2}, v{e+4} offset:1024")

    def poll(label, loads, words, mask, mult, acc=30):
        n = sum(len(w) for w in words)
        a(f"s_mul_i32 {T3}, {S_TAG}, {(-n * mult) & 0xffffffff}\ns_mov_b32 {S_CNT}, 0")
        a(f"{label}:")
        for l in loads: a(l)
        first = True
        for k, w in enumerate(words):
            a(f"s_waitcnt vmcnt({len(loads)-1-k})")
            w = list(w)
            while w:
                src = T3 if first else f"v{acc}"
                if len(w) >= 2:
                    a(f"v_add3_u32 v{acc}, v{w[0]}, v{w[1]}, {src}"); w = w[2:]
                else:
                    a(f"v_add_u32 v{acc}, {src}, v{w[0]}"); w = w[1:]
                first = False
        a(f"v_and_b32 v{acc}, {mask}, v{acc}\nv_cmp_ne_u32 vcc, 0, v{acc}")
        a(f"s_add_u32 {S_CNT}, {S_CNT}, 1\ns_cmp_gt_u32 {S_CNT}, {SPIN}\ns_cbranch_scc1 {label}_x\ns_cbranch_vccnz {label}")
        a(f"{label}_x:")

    def blk_soff(t, dst):
        a(f"s_add_u32 {dst}, {S_ROT}, {4*t}\ns_and_b32 {dst}, {dst}, 31\ns_lshl_b32 {dst}, {dst}, 12")

    def dma_voff128(dst, stride):
        a(f"v_lshrrev_b32 v{dst}, 3, v1\nv_mul_u32_u24 v{dst}, {stride}, v{dst}")
        a(f"v_bfe_u32 v28, v1, 4, 1\ns_and_b32 {T0}, {S_U}, 1\ns_lshl_b32 {T0}, {T0}, 1\nv_or_b32 v28, {T0}, v28\nv_lshlrev_b32 v28, 1, v28")
        a(f"v_and_b32 v29, 7, v1\nv_xor_b32 v28, v28, v29\nv_lshl_add_u32 v{dst}, v28, 4, v{dst}")

    def tr_parts128(vrow, vsw):
        a(f"v_lshrrev_b32 v28, 4, v1\nv_bfe_u32 v29, v1, 2, 2\nv_lshl_add_u32 v{vrow}, v28, 3, v29\nv_lshlrev_b32 v{vrow}, 7, v{vrow}")
        a(f"v_and_b32 v29, 3, v1\nv_lshl_add_u32 v{vrow}, v29, 3, v{vrow}")
        a(f"v_bfe_u32 v{vsw}, v1, 3, 2\nv_lshlrev_b32 v{vsw}, 5, v{vsw}")

    def dma(voff, srdn, soff, m0expr):
        a(m0expr)
        a(f"buffer_load_dwordx4 v{voff}, {srdn}, {soff} offen {nt} lds")

    a("s_cmp_ge_u32 s2, 256\ns_cbranch_scc1 L_end")
    a("s_load_dwordx16 s[4:19], s[0:1], 0\ns_load_dwordx8 s[20:27], s[0:1], 64")
    if calib or dbg: a("s_memrealtime s[98:99]")
    if stamps:
        a("s_memrealtime s[64:65]")
        for k in range(66, 80): a(f"s_mov_b32 s{k}, 0")
    a(f"v_lshrrev_b32 v2, 6, v0\nv_and_b32 v1, 63, v0\nv_readfirstlane_b32 {S_WAVE}, v2")
    a(f"s_and_b32 {S_X}, s2, 7\ns_lshr_b32 {S_Y}, s2, 3")
    a(f"s_lshr_b32 {T0}, {S_Y}, 4\ns_lshl_b32 {S_HKV}, {S_X}, 1\ns_add_u32 {S_HKV}, {S_HKV}, {T0}")
    a(f"s_and_b32 {S_I}, {S_Y}, 15\ns_lshr_b32 {S_B}, {S_I}, 2\ns_and_b32 {S_S}, {S_I}, 3")
    a(f"s_and_b32 {S_U}, {S_WAVE}, 3")
    a(f"s_add_u32 {S_ROT}, {S_X}, {S_Y}\ns_add_u32 {S_ROT}, {S_ROT}, {S_U}")
    a(f"s_mov_b32 {S_MLO}, 0xffffff00\ns_mov_b32 {S_MHI}, 0xffff0000")
    a(f"s_lshl_b32 {T0}, {S_B}, 4\ns_add_u32 {T0}, {T0}, {S_HKV}\ns_lshl_b32 {T0}, {T0}, 21\ns_lshl_b32 {T1}, {S_S}, 17\ns_add_u32 {T0}, {T0}, {T1}\ns_add_u32 {T2}, {T0}, 0x180000")
    a("s_waitcnt lgkmcnt(0)")
    a(f"s_load_dword {S_TAG}, s[26:27], {P3}")
    srd(sWS, 26, None, WS_SZ)
    a(f"s_cmp_ge_u32 {S_WAVE}, 4\ns_cbranch_scc1 L_KW")

    VB, PB, AT, MK, DD = 32, 160, 192, 200, 204
    a("s_setprio 2")
    srd(sKV, 8, T2, 0x20000)
    srd(sX, 4, None, 4608)
    a(f"s_mul_i32 {T0}, {S_U}, 1152\nv_lshlrev_b32 v2, 3, v1\nv_lshlrev_b32 v3, 1, v1")
    a(f"buffer_load_dwordx2 v[10:11], v2, {sX}, {T0} offen\nbuffer_load_dwordx2 v[12:13], v2, {sX}, {T0} offen offset:512\nbuffer_load_ushort v22, v3, {sX}, {T0} offen offset:1024")
    a(f"s_mul_i32 {T1}, {S_B}, {144*8192}\ns_lshl_b32 {T2}, {S_HKV}, 9\ns_add_u32 {T1}, {T1}, {T2}\ns_lshl_b32 {T2}, {S_S}, 7\ns_add_u32 {T1}, {T1}, {T2}")
    srd(sW1, 10, T1, 143 * 8192 + 128)
    dma_voff128(4, 8192)
    a(f"s_lshl_b32 {T1}, {S_U}, 16\ns_lshl_b32 {T2}, {S_U}, 10")
    for k in range(5):
        dma(4, sW1, T1, f"s_add_u32 m0, {T2}, {L_WQ + k*4096}")
        if k < 4: a(f"s_add_u32 {T1}, {T1}, {4*65536}")
    npre = 0
    if prefetch:
        a("s_getpc_b64 s[40:41]\nL_pc:\ns_mov_b32 s42, L_codeend-L_pc\ns_mov_b32 s43, 0x20000")
        a(f"v_lshlrev_b32 v5, 7, v0\nbuffer_load_dword v23, v5, {sW2}, 0 offen")
        npre = 1
    a(f"s_mul_i32 {T0}, {S_U}, {LN_STR}\ns_add_u32 {T0}, {T0}, {L_LN}\nv_add_u32 v2, {T0}, v2\nv_add_u32 v3, {T0}, v3")
    a(f"s_waitcnt vmcnt({5+npre})")
    a(f"v_and_b32 v15, {S_MHI}, v10\nv_lshlrev_b32 v14, 16, v10\nv_and_b32 v17, {S_MHI}, v11\nv_lshlrev_b32 v16, 16, v11")
    a(f"v_and_b32 v19, {S_MHI}, v12\nv_lshlrev_b32 v18, 16, v12\nv_and_b32 v21, {S_MHI}, v13\nv_lshlrev_b32 v20, 16, v13\nv_lshlrev_b32 v22, 16, v22")
    layernorm(14, 24, 2, 3)
    tr_parts128(6, 7)
    a(f"s_lshl_b32 {T0}, {S_U}, 5\nv_xor_b32 v8, {T0}, v7\nv_add3_u32 v8, v8, v6, 0\nv_add_u32 v8, {L_WQ}, v8")
    a(f"v_lshrrev_b32 v9, 2, v1\nv_lshlrev_b32 v9, 7, v9\nv_and_b32 v28, 3, v1\nv_lshl_add_u32 v9, v28, 3, v9")
    a(f"v_bfe_u32 v28, v1, 3, 1\nv_bfe_u32 v29, v1, 5, 1\nv_lshl_add_u32 v28, v29, 1, v28\nv_lshlrev_b32 v28, 5, v28\nv_xor_b32 v28, {T0}, v28\nv_add_u32 v9, v9, v28\nv_add_u32 v9, {L_WQ + 128*128}, v9")
    a(f"v_and_b32 v10, 3, v1\nv_mul_u32_u24 v10, {LN_STR}, v10\nv_lshrrev_b32 v28, 4, v1\nv_lshl_add_u32 v11, v28, 3, v10\nv_lshl_add_u32 v10, v28, 4, v10\nv_add_u32 v10, {L_LN}, v10")
    a(f"s_mul_i32 {T0}, {S_B}, 288\nv_add_u32 v12, {T0}, v10\ns_add_u32 {T0}, {T0}, {L_LN+256}\nv_add_u32 v11, {T0}, v11")
    a(f"v_and_b32 v13, 3, v1\nv_lshlrev_b32 v13, 12, v13\nv_lshl_add_u32 v13, v28, 4, v13")
    a(f"s_lshl_b32 {T0}, {S_HKV}, 14\ns_lshl_b32 {T1}, {S_B}, 10\ns_add_u32 {T0}, {T0}, {T1}\ns_lshl_b32 {T1}, {S_S}, 8\ns_add_u32 {T0}, {T0}, {T1}\ns_lshl_b32 {T1}, {S_U}, 6\ns_add_u32 {T0}, {T0}, {T1}")
    if QP: a(f"s_add_u32 {T0}, {T0}, {QP}")
    a("s_waitcnt vmcnt(0) lgkmcnt(0)")
    a(f"s_add_u32 {S_TAG}, {S_TAG}, 1\ns_and_b32 {S_TAG}, {S_TAG}, 0xff\nv_mov_b32 v31, {S_TAG}")
    stamp(1)
    a("s_barrier")
    for t in range(4):
        a(f"ds_read_b64_tr_b16 v[{32+4*t}:{33+4*t}], v8 offset:{t*4096}\nds_read_b64_tr_b16 v[{34+4*t}:{35+4*t}], v8 offset:{t*4096+512}")
        a(f"ds_read_b128 v[{52+4*t}:{55+4*t}], v12 offset:{t*64}")
    a("ds_read_b64_tr_b16 v[48:49], v9\nds_read_b64 v[68:69], v11")
    a("s_waitcnt lgkmcnt(0)")
    for t in range(4):
        a(f"v_mfma_f32_16x16x32_bf16 v[72:75], v[{32+4*t}:{35+4*t}], v[{52+4*t}:{55+4*t}], {'0' if t == 0 else 'v[72:75]'}")
    a("s_nop 7\nv_mfma_f32_16x16x16_bf16 v[72:75], v[48:49], v[68:69], v[72:75]")
    a(f"v_and_b32 v28, 12, v1\nv_cmp_eq_u32 {SM}, 0, v28")
    tag4(72)
    a(f"s_mov_b64 exec, {SM}\nbuffer_store_dwordx4 v[72:75], v13, {sWS}, {T0} offen sc1\ns_mov_b64 exec, -1")
    a(f"v_lshrrev_b32 v28, 4, v1\nv_and_b32 v29, 15, v1\nv_lshlrev_b32 v13, 10, v28\nv_lshl_add_u32 v13, v29, 4, v13")
    a(f"s_lshl_b32 {T0}, {S_HKV}, 14\ns_lshl_b32 {T1}, {S_B}, 12\ns_add_u32 {T0}, {T0}, {T1}\ns_lshl_b32 {T1}, {S_U}, 8\ns_add_u32 {T0}, {T0}, {T1}")
    if QP: a(f"s_add_u32 {T0}, {T0}, {QP}")
    a(f"v_lshlrev_b32 v14, 3, v29\nv_lshl_add_u32 v14, v28, 1, v14\ns_lshr_b32 {T1}, {S_U}, 1\ns_mul_i32 {T1}, {T1}, {Q_STR}\ns_and_b32 {T2}, {S_U}, 1\ns_lshl_b32 {T2}, {T2}, 7\ns_add_u32 {T1}, {T1}, {T2}\ns_add_u32 {T1}, {T1}, {L_Q}\nv_add_u32 v14, {T1}, v14")
    a(f"v_and_b32 v15, 1, v1\nv_cmp_eq_u32 vcc, 1, v15\nv_mov_b32 v16, 0xffff\nv_mov_b32 v17, {S_MHI}\nv_cndmask_b32 v16, v16, v17, vcc\nv_bfe_u32 v15, v1, 1, 2")
    for k in range(4):
        a(f"v_cmp_eq_u32 vcc, {k}, v15\nv_cndmask_b32 v{MK+k}, 0, v16, vcc")
    a(f"v_bfe_u32 v15, v1, 3, 1\nv_mul_u32_u24 v15, 576, v15\nv_mul_u32_u24 v16, 144, v28\ns_mul_i32 {T1}, {S_U}, 1152\ns_add_u32 {T1}, {T1}, {L_P}\nv_add3_u32 v15, v15, v16, {T1}")
    a("v_lshlrev_b32 v16, 4, v1")
    stamp(2)
    poll("L_pq", [f"buffer_load_dwordx4 v[72:75], v13, {sWS}, {T0} offen sc1"], [[72, 73, 74, 75]], "0xff", 1)
    red_rows(72, 72)
    a("v_cvt_pk_bf16_f32 v72, v72, v72\nds_write_b16 v14, v72\ns_waitcnt lgkmcnt(0)")
    stamp(3)
    a("s_barrier")

    def vload(T):
        if T % 4 == 0: blk_soff(T // 4, T0)
        a(f"buffer_load_dwordx4 v[{VB+4*T}:{VB+4*T+3}], v16, {sKV}, {T0} offen offset:{(T%4)*1024} {nt}")
    for T in range(D): vload(T)
    a("s_barrier")
    for q in range(8):
        a(f"ds_read_b128 v[{PB+4*q}:{PB+4*q+3}], v15 offset:{q*16}")
    a(f"v_lshrrev_b32 v17, 5, v1\nv_lshlrev_b32 v17, 3, v17\nv_add_u32 v17, {L_ST}, v17")
    for k in range(4): a(f"ds_read_b32 v{20+k}, v17 offset:{16*k}")
    a(f"s_lshl_b32 {T1}, {S_U}, 10\ns_add_u32 {T1}, {T1}, {L_OR}\nv_add_u32 v18, {T1}, v16")
    a("s_waitcnt lgkmcnt(0)")
    a("v_max3_f32 v24, v20, v21, v22\nv_max_f32 v24, v24, v23")
    for k in range(4): a(f"v_sub_f32 v{20+k}, v{20+k}, v24\nv_mul_f32 v{20+k}, {LOG2E}, v{20+k}\nv_exp_f32 v{20+k}, v{20+k}")
    a(f"v_lshrrev_b32 v19, 5, v1\nv_lshlrev_b32 v19, 13, v19\nv_and_b32 v28, 15, v1\nv_lshl_add_u32 v19, v28, 5, v19\nv_bfe_u32 v28, v1, 4, 1\nv_lshl_add_u32 v19, v28, 4, v19")
    a(f"s_lshl_b32 {T1}, {S_HKV}, 14\ns_lshl_b32 {T2}, {S_I}, 9\ns_add_u32 {T1}, {T1}, {T2}\ns_add_u32 {T1}, {T1}, {OP}")
    issued = D
    for T in range(32):
        at = AT + 4 * (T & 1)
        for k in range(4): a(f"v_and_b32 v{at+k}, v{PB+T}, v{MK+k}")
        a(f"s_waitcnt vmcnt({issued-1-T})")
        a(f"v_mfma_f32_16x16x32_bf16 v[{DD}:{DD+3}], v[{at}:{at+3}], v[{VB+4*T}:{VB+4*T+3}], {'0' if T == 0 else f'v[{DD}:{DD+3}]'}")
        if issued < 32:
            vload(issued); issued += 1
        if T == 31 - D + late:
            stamp(4)
            a("s_barrier")
    a(f"ds_write_b128 v18, v[{DD}:{DD+3}]\ns_waitcnt lgkmcnt(0)")
    stamp(5)
    a("s_barrier")
    a(f"s_cmp_lg_u32 {S_U}, 0\ns_cbranch_scc1 L_V_tail")
    for k in range(1, 4): a(f"ds_read_b128 v[{32+4*k}:{35+4*k}], v18 offset:{1024*k}")
    for r in range(4): a(f"v_mul_f32 v{DD+r}, v{DD+r}, v20")
    for k in range(1, 4):
        a(f"s_waitcnt lgkmcnt({3-k})")
        for r in range(4): a(f"v_fmac_f32 v{DD+r}, v{32+4*k+r}, v{20+k}")
    tag4(DD)
    a(f"buffer_store_dwordx4 v[{DD}:{DD+3}], v19, {sWS}, {T1} offen sc1")
    a("L_V_tail:")
    a(f"s_cmp_lt_u32 {S_Y}, 18\ns_cbranch_scc1 L_V_ffn\ns_cmp_ge_u32 {S_Y}, 30\ns_cbranch_scc1 L_exit")
    a(f"s_sub_u32 {T0}, {S_Y}, 18\ns_mul_i32 {T1}, {T0}, 43\ns_lshr_b32 {T1}, {T1}, 7\ns_mul_i32 {T2}, {T1}, 3\ns_sub_u32 {S_CBO}, {T0}, {T2}\ns_lshl_b32 {S_HEAD}, {S_X}, 2\ns_add_u32 {S_HEAD}, {S_HEAD}, {T1}")
    for k in range(3):
        a(f"s_mul_i32 {T0}, {S_U}, 3\ns_add_u32 {T0}, {T0}, {k}\ns_and_b32 {T1}, {T0}, 3\ns_lshl_b32 {T1}, {T1}, 5\ns_lshr_b32 {T0}, {T0}, 2\ns_lshl_b32 {T0}, {T0}, 14")
        a(f"v_xor_b32 v{2+k}, {T1}, v7\nv_add3_u32 v{2+k}, v{2+k}, v6, {T0}")
    a(f"v_and_b32 v10, 3, v1\nv_mul_u32_u24 v10, {OB_STR}, v10\nv_lshrrev_b32 v28, 4, v1\nv_lshl_add_u32 v10, v28, 4, v10\nv_add_u32 v10, {L_OB}, v10")
    a(f"v_bfe_u32 v11, v1, 1, 3\nv_lshlrev_b32 v11, 12, v11\nv_and_b32 v29, 1, v1\nv_lshl_add_u32 v11, v29, 6, v11\nv_lshl_add_u32 v11, v28, 4, v11")
    a(f"s_mul_i32 {T0}, {S_CBO}, 12\ns_mul_i32 {T1}, {S_U}, 3\ns_add_u32 {T0}, {T0}, {T1}\ns_lshl_b32 {T0}, {T0}, 13\ns_lshl_b32 {T1}, {S_HEAD}, 7\ns_add_u32 {T0}, {T0}, {T1}\ns_add_u32 {T0}, {T0}, {P1}")
    a(f"v_and_b32 v28, 12, v1\nv_cmp_ne_u32 {SM}, 12, v28")
    a("s_barrier")
    for k in range(3):
        for t in range(4):
            r = 32 + 16 * k + 4 * t
            a(f"ds_read_b64_tr_b16 v[{r}:{r+1}], v{2+k} offset:{t*4096}\nds_read_b64_tr_b16 v[{r+2}:{r+3}], v{2+k} offset:{t*4096+512}")
    a("s_waitcnt lgkmcnt(0)")
    a("s_barrier")
    for t in range(4): a(f"ds_read_b128 v[{160+4*t}:{163+4*t}], v10 offset:{t*64}")
    for t in range(4):
        a(f"s_waitcnt lgkmcnt({3-t})")
        for k in range(3):
            r = 32 + 16 * k + 4 * t
            a(f"v_mfma_f32_16x16x32_bf16 v[{180+4*k}:{183+4*k}], v[{r}:{r+3}], v[{160+4*t}:{163+4*t}], {'0' if t == 0 else f'v[{180+4*k}:{183+4*k}]'}")
    for k in (1, 2):
        for r in range(4): a(f"v_mov_b32_dpp v{180+r}, v{180+4*k+r} quad_perm:[0,1,2,3] row_mask:0xf bank_mask:{hex(1<<k)}")
    tag4(180)
    a(f"s_mov_b64 exec, {SM}\nbuffer_store_dwordx4 v[180:183], v11, {sWS}, {T0} offen sc1\ns_mov_b64 exec, -1")
    stamp(6)
    a("s_branch L_exit")
    a("L_V_ffn:")
    a(f"s_mul_i32 {S_FIDX}, {S_X}, 18\ns_add_u32 {S_FIDX}, {S_FIDX}, {S_Y}")
    a(f"v_lshrrev_b32 v28, 4, v1\nv_bfe_u32 v29, v1, 2, 2\nv_lshl_add_u32 v2, v28, 3, v29\nv_lshlrev_b32 v2, 6, v2\nv_and_b32 v29, 3, v1\nv_lshl_add_u32 v2, v29, 3, v2")
    a(f"v_xor_b32 v29, {S_U}, v28\nv_and_b32 v29, 1, v29\nv_lshl_add_u32 v2, v29, 5, v2\ns_lshr_b32 {T0}, {S_U}, 1\ns_mul_i32 {T1}, {T0}, 36864\nv_add_u32 v2, {T1}, v2")
    a(f"v_and_b32 v3, 3, v1\nv_lshlrev_b32 v3, 7, v3\nv_lshl_add_u32 v4, v28, 5, v3\nv_lshl_add_u32 v3, v28, 4, v3")
    a(f"s_lshl_b32 {T0}, {T0}, 9\ns_and_b32 {T1}, {S_U}, 1\ns_lshl_b32 {T1}, {T1}, 6\ns_add_u32 {T0}, {T0}, {T1}\ns_add_u32 {T0}, {T0}, {L_GU}\nv_add_u32 v3, {T0}, v3")
    a(f"v_bfe_u32 v29, v1, 2, 2\nv_lshl_add_u32 v4, v29, 3, v4\nv_add_u32 v4, {L_GU}, v4")
    for k in range(9):
        a(f"s_mul_i32 {T0}, {S_U}, 9\ns_add_u32 {T0}, {T0}, {k}\ns_and_b32 {T1}, {T0}, 3\ns_lshl_b32 {T1}, {T1}, 5\ns_lshr_b32 {T0}, {T0}, 2\ns_lshl_b32 {T0}, {T0}, 12\ns_add_u32 {T0}, {T0}, {L_W+73728}")
        a(f"v_xor_b32 v{12+k}, {T1}, v7\nv_add3_u32 v{12+k}, v{12+k}, v6, {T0}")
    a(f"v_bfe_u32 v11, v1, 1, 3\nv_mul_u32_u24 v11, 18432, v11\nv_and_b32 v29, 1, v1\nv_lshl_add_u32 v11, v29, 6, v11\nv_lshl_add_u32 v11, v28, 4, v11")
    a(f"s_mul_i32 {T0}, {S_U}, {9*36864}\ns_lshl_b32 {T1}, {S_FIDX}, 7\ns_add_u32 {T0}, {T0}, {T1}\ns_add_u32 {T0}, {T0}, {P3}\ns_add_u32 {T1}, {T0}, {3*36864}\ns_add_u32 {T2}, {T0}, {6*36864}")
    a(f"v_and_b32 v29, 12, v1\nv_cmp_ne_u32 {SV}, 12, v29")
    for k in range(12): a(f"v_mov_b32 v{232+k}, 0")
    a("s_barrier")
    for t in range(18):
        a(f"ds_read_b64_tr_b16 v[{32+4*t}:{33+4*t}], v2 offset:{t*2048}\nds_read_b64_tr_b16 v[{34+4*t}:{35+4*t}], v2 offset:{t*2048+256}")
    for k in range(9):
        a(f"ds_read_b64_tr_b16 v[{104+4*k}:{105+4*k}], v{12+k}\nds_read_b64_tr_b16 v[{106+4*k}:{107+4*k}], v{12+k} offset:512")
    a("s_waitcnt lgkmcnt(0)")
    a("s_barrier")
    nrd = 0
    for t in range(18):
        while nrd < min(18, t + 8):
            a(f"ds_read_b128 v[{160+4*nrd}:{163+4*nrd}], v10 offset:{nrd*64}"); nrd += 1
        a(f"s_waitcnt lgkmcnt({nrd-1-t})")
        a(f"v_mfma_f32_16x16x32_bf16 v[140:143], v[{32+4*t}:{35+4*t}], v[{160+4*t}:{163+4*t}], {'0' if t == 0 else 'v[140:143]'}")
    a(f"s_mov_b64 exec, {SM}\nds_write_b128 v3, v[140:143]\ns_mov_b64 exec, -1\ns_waitcnt lgkmcnt(0)")
    a("s_barrier")
    a("ds_read_b64 v[144:145], v4\nds_read_b64 v[146:147], v4 offset:512\ns_waitcnt lgkmcnt(0)")
    a(f"v_cvt_pk_bf16_f32 v144, v144, v145\nv_cvt_pk_bf16_f32 v146, v146, v147")
    a(f"v_and_b32 v145, {S_MHI}, v144\nv_lshlrev_b32 v144, 16, v144\nv_and_b32 v147, {S_MHI}, v146\nv_lshlrev_b32 v146, 16, v146")
    a("v_mov_b32 v150, 0xC0135761")
    a("v_mul_f32 v148, v144, v144\nv_mul_f32 v149, v145, v145")
    a("v_fmamk_f32 v148, v148, 0xBDD2D3E8, v150\nv_fmamk_f32 v149, v149, 0xBDD2D3E8, v150")
    a("v_mul_f32 v148, v148, v144\nv_mul_f32 v149, v149, v145\nv_exp_f32 v148, v148\nv_exp_f32 v149, v149")
    a("v_add_f32 v148, 1.0, v148\nv_add_f32 v149, 1.0, v149\nv_rcp_f32 v148, v148\nv_rcp_f32 v149, v149")
    a("v_mul_f32 v148, v148, v144\nv_mul_f32 v149, v149, v145\nv_cvt_pk_bf16_f32 v148, v148, v149")
    a(f"v_and_b32 v149, {S_MHI}, v148\nv_lshlrev_b32 v148, 16, v148\nv_mul_f32 v148, v148, v146\nv_mul_f32 v149, v149, v147\nv_cvt_pk_bf16_f32 v148, v148, v149")
    for t in range(3):
        for i in range(4):
            rot = (4 * (t - i)) % 16
            ctl = "quad_perm:[0,1,2,3]" if rot == 0 else f"row_ror:{rot}"
            a(f"v_mov_b32_dpp v{232+4*t+i}, v148 {ctl} row_mask:0xf bank_mask:{hex(1<<t)}")
    for t in range(3):
        for q in range(3):
            k = 3 * q + t
            a(f"v_mfma_f32_16x16x32_bf16 v[{160+4*q}:{163+4*q}], v[{104+4*k}:{107+4*k}], v[{232+4*t}:{235+4*t}], {'0' if t == 0 else f'v[{160+4*q}:{163+4*q}]'}")
    a(f"s_mov_b64 exec, {SV}")
    for q in range(3):
        tag4(160 + 4 * q)
        a(f"buffer_store_dwordx4 v[{160+4*q}:{163+4*q}], v11, {sWS}, {[T0,T1,T2][q]} offen sc1")
    a("s_mov_b64 exec, -1")
    stamp(6)
    a("s_branch L_exit")

    KB, QF, DK, SS = 32, 160, 168, 184
    a("L_KW:")
    srd(sKV, 6, T2, 0x20000)
    a("v_bfe_u32 v2, v1, 1, 3\nv_lshlrev_b32 v2, 8, v2\nv_lshrrev_b32 v28, 4, v1\nv_lshl_add_u32 v2, v28, 5, v2\nv_and_b32 v29, 1, v1\nv_lshl_add_u32 v2, v29, 4, v2")

    def kload(n):
        if n % 4 == 0: blk_soff(n // 4, T0)
        a(f"buffer_load_dwordx4 v[{KB+4*n}:{KB+4*n+3}], v2, {sKV}, {T0} offen offset:{((n>>1)&1)*2048 + (n&1)*128} {nt}")
    for n in range(D): kload(n)
    a(f"v_bfe_u32 v3, v1, 1, 1\nv_mul_u32_u24 v3, {Q_STR}, v3\nv_lshl_add_u32 v3, v28, 5, v3\nv_lshl_add_u32 v3, v29, 4, v3\nv_add_u32 v3, {L_Q}, v3")
    a(f"v_mul_u32_u24 v4, 576, v29\nv_bfe_u32 v5, v1, 1, 2\nv_mul_u32_u24 v5, 144, v5\ns_mul_i32 {T1}, {S_U}, 1152\ns_add_u32 {T1}, {T1}, {L_P}\nv_add3_u32 v4, v4, v5, {T1}\nv_lshrrev_b32 v5, 3, v1\nv_lshl_add_u32 v4, v5, 2, v4")
    a(f"s_lshl_b32 {T1}, {S_U}, 4\ns_add_u32 {T1}, {T1}, {L_ST}\nv_lshl_add_u32 v5, v29, 3, {T1}")
    a(f"v_cmp_eq_u32 {SM}, 1, v29")
    a("s_waitcnt lgkmcnt(0)")
    a(f"s_add_u32 {S_TAG}, {S_TAG}, 1\ns_and_b32 {S_TAG}, {S_TAG}, 0xff\nv_mov_b32 v31, {S_TAG}")
    a("s_barrier")
    for n in range(D, 32):
        a(f"s_waitcnt vmcnt({D-1})")
        kload(n)
    stamp(1)
    a("s_barrier")
    a(f"ds_read_b128 v[{QF}:{QF+3}], v3\nds_read_b128 v[{QF+4}:{QF+7}], v3 offset:128\ns_waitcnt lgkmcnt(0)")
    for G in range(4):
        for v in range(4):
            n = 8 * G + 2 * v
            if 31 - (n + 1) < D: a(f"s_waitcnt vmcnt({31-(n+1)})")
            a(f"v_mfma_f32_16x16x32_bf16 v[{DK+4*v}:{DK+4*v+3}], v[{QF}:{QF+3}], v[{KB+4*n}:{KB+4*n+3}], 0")
            a(f"v_mfma_f32_16x16x32_bf16 v[{DK+4*v}:{DK+4*v+3}], v[{QF+4}:{QF+7}], v[{KB+4*n+4}:{KB+4*n+7}], v[{DK+4*v}:{DK+4*v+3}]")
        for v in range(4):
            dpp("v_add_f32", SS + 4, DK + 4 * v + 1, DK + 4 * v, "quad_perm:[1,1,3,3]", rm=hex(1 << v))
            dpp("v_add_f32", SS + 5, DK + 4 * v + 2, DK + 4 * v + 3, "quad_perm:[0,0,2,2]", rm=hex(1 << v))
        a(f"v_cndmask_b32 v{SS+G}, v{SS+4}, v{SS+5}, {SM}")
    stamp(2)
    for rep in range(2):
        a(f"v_cvt_pk_bf16_f32 v{SS}, v{SS}, v{SS+1}\nv_cvt_pk_bf16_f32 v{SS+2}, v{SS+2}, v{SS+3}")
        a(f"v_and_b32 v{SS+1}, {S_MHI}, v{SS}\nv_lshlrev_b32 v{SS}, 16, v{SS}\nv_and_b32 v{SS+3}, {S_MHI}, v{SS+2}\nv_lshlrev_b32 v{SS+2}, 16, v{SS+2}")
        if rep == 0:
            for k in range(4): a(f"v_mul_f32 v{SS+k}, {SCALE}, v{SS+k}")
    MM, LL = SS + 6, SS + 7
    a(f"v_max3_f32 v{MM}, v{SS}, v{SS+1}, v{SS+2}\nv_max_f32 v{MM}, v{MM}, v{SS+3}")
    for ctl in ("quad_perm:[2,3,0,1]", "row_ror:4", "row_ror:8"): dpp("v_max_f32", MM, MM, MM, ctl)
    all_rows("v_max_f32", MM, SS + 4)
    for k in range(4): a(f"v_sub_f32 v{SS+k}, v{SS+k}, v{MM}\nv_mul_f32 v{SS+k}, {LOG2E}, v{SS+k}\nv_exp_f32 v{SS+k}, v{SS+k}")
    a(f"v_add_f32 v{LL}, v{SS}, v{SS+1}\nv_add_f32 v{SS+4}, v{SS+2}, v{SS+3}\nv_add_f32 v{LL}, v{LL}, v{SS+4}")
    for k in range(4): a(f"v_cvt_pk_bf16_f32 v{SS+k}, v{SS+k}, v{SS+k}\nds_write_b32 v4, v{SS+k} offset:{32*k}")
    for ctl in ("quad_perm:[2,3,0,1]", "row_ror:4", "row_ror:8"): dpp("v_add_f32", LL, LL, LL, ctl)
    all_rows("v_add_f32", LL, SS + 4)
    a(f"s_mov_b64 exec, 3\nds_write_b64 v5, v[{MM}:{LL}]\ns_mov_b64 exec, -1\ns_waitcnt lgkmcnt(0)")
    stamp(3)
    a("s_barrier")
    a(f"s_cmp_lg_u32 {S_U}, 0\ns_cbranch_scc1 L_K_nostat")
    for k in range(4): a(f"ds_read_b64 v[{32+2*k}:{33+2*k}], v5 offset:{16*k}")
    a(f"v_lshlrev_b32 v6, 8, v29\ns_lshl_b32 {T1}, {S_HKV}, 9\ns_lshl_b32 {T2}, {S_I}, 4\ns_add_u32 {T1}, {T1}, {T2}\ns_add_u32 {T1}, {T1}, {STT}")
    a("s_waitcnt lgkmcnt(0)\nv_max3_f32 v40, v32, v34, v36\nv_max_f32 v40, v40, v38")
    for k in range(4): a(f"v_sub_f32 v{32+2*k}, v{32+2*k}, v40\nv_mul_f32 v{32+2*k}, {LOG2E}, v{32+2*k}\nv_exp_f32 v{32+2*k}, v{32+2*k}")
    a("v_mul_f32 v41, v32, v33\nv_fmac_f32 v41, v34, v35\nv_fmac_f32 v41, v36, v37\nv_fmac_f32 v41, v38, v39\nv_mov_b32 v42, v41\nv_mov_b32 v43, v41")
    tag4(40)
    a(f"s_mov_b64 exec, 3\nbuffer_store_dwordx4 v[40:43], v6, {sWS}, {T1} offen sc1\ns_mov_b64 exec, -1\ns_waitcnt vmcnt(0)")
    a("L_K_nostat:")
    a(f"s_cmp_lt_u32 {S_Y}, 18\ns_cbranch_scc1 L_K_ffn\ns_cmp_ge_u32 {S_Y}, 30\ns_cbranch_scc1 L_K_free")

    def paced(lst):
        a("s_barrier")
        for k, f in enumerate(lst):
            if k == DW: a("s_barrier")
            if k >= DW: a(f"s_waitcnt vmcnt({DW-1})")
            f()
        if len(lst) <= DW: a("s_barrier")
        a("s_waitcnt vmcnt(0)")
        stamp(4)
        a("s_barrier")

    a(f"s_sub_u32 {T0}, {S_Y}, 18\ns_mul_i32 {T1}, {T0}, 43\ns_lshr_b32 {T1}, {T1}, 7\ns_mul_i32 {T2}, {T1}, 3\ns_sub_u32 {S_CBO}, {T0}, {T2}\ns_lshl_b32 {S_HEAD}, {S_X}, 2\ns_add_u32 {S_HEAD}, {S_HEAD}, {T1}")
    a(f"s_mul_i32 {T0}, {S_HEAD}, {128*1152}\ns_mul_i32 {T1}, {S_CBO}, 384\ns_add_u32 {T0}, {T0}, {T1}")
    srd(sW1, 12, T0, 127 * 1152 + 384)
    dma_voff128(6, 1152)
    a(f"s_mul_i32 {T1}, {S_U}, {8*1152}\ns_lshl_b32 {T2}, {S_U}, 10")
    a(f"v_lshrrev_b32 v28, 4, v1\nv_and_b32 v29, 15, v1\nv_lshlrev_b32 v7, 9, v28\nv_lshl_add_u32 v7, v29, 4, v7\nv_lshlrev_b32 v8, 4, v28")
    a(f"v_lshlrev_b32 v9, 3, v29\nv_lshl_add_u32 v9, v28, 1, v9\ns_mul_i32 {T0}, {S_U}, {OB_STR}\ns_add_u32 {T0}, {T0}, {L_OB}\nv_add_u32 v9, {T0}, v9")
    lst = []
    for k in range(4):
        for cb in range(3):
            def f(k=k, cb=cb):
                a(f"s_add_u32 {T0}, {T1}, {k*32*1152 + cb*128}")
                dma(6, sW1, T0, f"s_add_u32 m0, {T2}, {L_W + cb*16384 + k*4096}")
            lst.append(f)
    paced(lst)
    a(f"s_lshl_b32 {T0}, {S_HEAD}, 2\ns_add_u32 {T0}, {T0}, {S_U}\ns_lshl_b32 {T1}, {T0}, 6\ns_add_u32 {T1}, {T1}, {STT}\ns_lshl_b32 {T0}, {T0}, 11\ns_add_u32 {T0}, {T0}, {OP}")
    poll("L_pst", [f"buffer_load_dwordx4 v[40:43], v8, {sWS}, {T1} offen sc1"], [[40, 41, 42, 43]], "0xff", 1)
    a(f"v_and_b32 v40, {S_MHI}, v40\nv_mov_b32 v42, v40")
    all_rows("v_max_f32", 42, 43)
    a(f"v_sub_f32 v40, v40, v42\nv_mul_f32 v40, {LOG2E}, v40\nv_exp_f32 v40, v40\nv_mul_f32 v41, v40, v41")
    all_rows("v_add_f32", 41, 43)
    a("v_rcp_f32 v41, v41\nv_mul_f32 v40, v40, v41")
    poll("L_pA", [f"buffer_load_dwordx4 v[32:35], v7, {sWS}, {T0} offen sc1", f"buffer_load_dwordx4 v[36:39], v7, {sWS}, {T0} offen offset:256 sc1"],
         [[32, 33, 34, 35], [36, 37, 38, 39]], "0xff", 1)
    for k in range(8): a(f"v_mul_f32 v{32+k}, v{32+k}, v40")
    red_rows(32, 32)
    red_rows(36, 36)
    a("v_cvt_pk_bf16_f32 v32, v32, v36\nds_write_b16 v9, v32\nds_write_b16_d16_hi v9, v32 offset:128\ns_waitcnt lgkmcnt(0)")
    stamp(5)
    a("s_barrier")
    a(f"s_cmp_lt_u32 {S_Y}, 23\ns_cbranch_scc1 L_exit\ns_branch L_K_red")
    a("L_K_free:\ns_barrier\ns_barrier")
    a("L_K_red:")
    a(f"s_cmp_lg_u32 {S_U}, 0\ns_cbranch_scc1 L_exit")
    a(f"s_mul_i32 {S_RID}, {S_X}, 9\ns_add_u32 {S_RID}, {S_RID}, {S_Y}\ns_sub_u32 {S_RID}, {S_RID}, 23")
    srd(sX, 4, None, 4608)
    srd(sOUT, 22, None, 4608)
    a(f"v_bfe_u32 v2, v1, 2, 1\nv_mul_u32_u24 v2, 1152, v2\nv_and_b32 v28, 3, v1\nv_lshl_add_u32 v2, v28, 3, v2\nv_lshrrev_b32 v28, 4, v1\nv_lshl_add_u32 v2, v28, 1, v2")
    a(f"s_and_b32 {T0}, {S_RID}, 1\ns_mul_i32 {T0}, {T0}, 2304\ns_lshr_b32 {T1}, {S_RID}, 1\ns_lshl_b32 {T1}, {T1}, 5\ns_add_u32 {T0}, {T0}, {T1}\nv_add_u32 v2, {T0}, v2")
    a(f"buffer_load_ushort v5, v2, {sX}, 0 offen")
    a(f"v_lshlrev_b32 v3, 4, v1\nv_and_b32 v4, 7, v1\nv_lshlrev_b32 v4, 4, v4\nv_lshl_add_u32 v4, v28, 2, v4")
    a(f"v_and_b32 v28, 8, v1\nv_cmp_eq_u32 {SM}, 0, v28")
    a(f"s_lshl_b32 {T0}, {S_RID}, 12\ns_add_u32 {T0}, {T0}, {P1}\ns_lshl_b32 {T1}, {S_RID}, 7\ns_add_u32 {T1}, {T1}, {HH}")
    a(f"s_mul_i32 {T2}, {S_TAG}, 0x101\nv_mov_b32 v6, {T2}")
    a("s_waitcnt vmcnt(0)\nv_lshlrev_b32 v5, 16, v5")
    poll("L_p1", [f"buffer_load_dwordx4 v[{32+4*k}:{35+4*k}], v3, {sWS}, {T0} offen offset:{1024*k} sc1" for k in range(4)],
         [list(range(32 + 4 * k, 36 + 4 * k)) for k in range(4)], "0xff", 1)
    a("v_pk_add_f32 v[32:33], v[32:33], v[36:37]\nv_pk_add_f32 v[34:35], v[34:35], v[38:39]\nv_pk_add_f32 v[40:41], v[40:41], v[44:45]\nv_pk_add_f32 v[42:43], v[42:43], v[46:47]")
    a("v_pk_add_f32 v[32:33], v[32:33], v[40:41]\nv_pk_add_f32 v[34:35], v[34:35], v[42:43]")
    red_rows(32, 32)
    dpp("v_add_f32", 32, 32, 32, "row_ror:8")
    rnd(32, 32)
    a("v_add_f32 v5, v5, v32")
    rnd(5, 5)
    a(f"v_or_b32 v7, v5, v6\ns_mov_b64 exec, {SM}\nbuffer_store_dword v7, v4, {sWS}, {T1} offen sc1\ns_mov_b64 exec, -1")
    stamp(6)
    a(f"s_mul_i32 {T0}, {S_RID}, 18432\ns_add_u32 {T0}, {T0}, {P3}")
    for k in range(1, 5): a(f"s_add_u32 s{4+k}, {T0}, {4096*k}")
    so = [T0, "s5", "s6", "s7", "s8"]
    poll("L_p3", [f"buffer_load_dwordx4 v[{32+4*k}:{35+4*k}], v3, {sWS}, {so[k//4]} offen offset:{1024*(k%4)} sc1" for k in range(18)],
         [list(range(32 + 4 * k, 36 + 4 * k)) for k in range(18)], "0xff", 1)
    n = 18
    while n > 1:
        h = (n + 1) // 2
        for k in range(n - h):
            for e in (0, 2):
                a(f"v_pk_add_f32 v[{32+4*k+e}:{33+4*k+e}], v[{32+4*k+e}:{33+4*k+e}], v[{32+4*(k+h)+e}:{33+4*(k+h)+e}]")
        n = h
    red_rows(32, 32)
    dpp("v_add_f32", 32, 32, 32, "row_ror:8")
    rnd(32, 32)
    a("v_add_f32 v5, v5, v32\nv_cvt_pk_bf16_f32 v5, v5, v5")
    a(f"s_mov_b64 exec, {SM}\nbuffer_store_short v5, v2, {sOUT}, 0 offen\ns_mov_b64 exec, -1")
    stamp(7)
    a("s_branch L_exit")
    a("L_K_ffn:")
    a(f"s_mul_i32 {S_FIDX}, {S_X}, 18\ns_add_u32 {S_FIDX}, {S_FIDX}, {S_Y}\ns_lshl_b32 {T0}, {S_FIDX}, 6")
    srd(sW1, 16, T0, 575 * 9216 + 64)
    srd(sW2, 18, T0, 575 * 9216 + 64)
    a(f"s_mul_i32 {T0}, {S_FIDX}, 36864")
    srd(sW3, 20, T0, 36864)
    dma_voff128(6, 1152)
    a("v_lshrrev_b32 v7, 2, v1\nv_mul_u32_u24 v7, 9216, v7\nv_bfe_u32 v28, v1, 5, 1\nv_lshlrev_b32 v28, 1, v28\nv_and_b32 v29, 3, v1\nv_xor_b32 v28, v28, v29\nv_lshl_add_u32 v7, v28, 4, v7")
    a(f"s_mul_i32 {T1}, {S_U}, {16*9216}\ns_lshl_b32 {T2}, {S_U}, 10\ns_mul_i32 s4, {S_U}, {8*1152}")
    a("v_lshrrev_b32 v8, 2, v1\nv_lshlrev_b32 v8, 8, v8\nv_lshl_add_u32 v8, v29, 4, v8")
    a("v_lshrrev_b32 v9, 4, v1\nv_lshlrev_b32 v9, 8, v9\nv_and_b32 v28, 15, v1\nv_lshl_add_u32 v9, v28, 2, v9")
    a(f"s_mul_i32 {T0}, {S_U}, {LN_STR}\ns_add_u32 {T0}, {T0}, {L_LN}\nv_lshl_add_u32 v10, v1, 3, {T0}\nv_lshl_add_u32 v11, v1, 1, {T0}")
    lst = []
    for k in range(9):
        for mat in range(2):
            def f(k=k, mat=mat):
                a(f"s_add_u32 {T0}, {T1}, {k*64*9216}")
                dma(7, [sW1, sW2][mat], T0, f"s_add_u32 m0, {T2}, {L_W + mat*36864 + k*4096}")
            lst.append(f)
    for cb in range(9):
        def f(cb=cb):
            a(f"s_add_u32 {T0}, s4, {cb*128}")
            dma(6, sW3, T0, f"s_add_u32 m0, {T2}, {L_W + 73728 + cb*4096}")
        lst.append(f)
    paced(lst)
    a(f"s_lshl_b32 {T0}, {S_U}, 6\ns_add_u32 {T0}, {T0}, {HH}\ns_add_u32 {T1}, {T0}, 4096\ns_add_u32 {T2}, {T0}, 8192")
    poll("L_p2", [f"buffer_load_dwordx4 v[32:35], v8, {sWS}, {T0} offen sc1", f"buffer_load_dwordx4 v[36:39], v8, {sWS}, {T1} offen sc1", f"buffer_load_dword v40, v9, {sWS}, {T2} offen sc1"],
         [[32, 33, 34, 35], [36, 37, 38, 39], [40]], "0xffff", 0x101)
    stamp(5)
    for k in range(9): a(f"v_and_b32 v{32+k}, {S_MHI}, v{32+k}")
    layernorm(32, 44, 10, 11)
    a("s_waitcnt lgkmcnt(0)")
    stamp(6)
    a("s_barrier")
    a("L_exit:")
    if dbg:
        a("s_memrealtime s[100:101]\ns_waitcnt lgkmcnt(0)\ns_not_b32 s98, s98\nv_mov_b32 v2, 0\nv_mov_b32 v3, s98\nv_mov_b32 v4, s100\ns_mov_b64 exec, 1")
        a("global_atomic_umax v2, v3, s[24:25]\nglobal_atomic_umax v2, v4, s[24:25] offset:4\ns_mov_b64 exec, -1")
    if calib:
        a(f"L_cal:\ns_memrealtime s[100:101]\ns_waitcnt lgkmcnt(0)\ns_sub_u32 s100, s100, s98\ns_cmp_lt_u32 s100, {calib*100}\ns_cbranch_scc1 L_cal")
    if stamps:
        a(f"s_lshl_b32 {T0}, s2, 3\ns_add_u32 {T0}, {T0}, {S_WAVE}\ns_lshl_b32 {T0}, {T0}, 5\ns_add_u32 {T0}, {T0}, {STAMPS}")
        for k in range(8): a(f"v_mov_b32 v{32+k}, s{64+2*k}")
        a(f"v_mov_b32 v2, 0\ns_mov_b64 exec, 1\nbuffer_store_dwordx4 v[32:35], v2, {sWS}, {T0} offen\nbuffer_store_dwordx4 v[36:39], v2, {sWS}, {T0} offen offset:16")
    a("L_end:\ns_endpgm\nL_codeend:")
    body = hazard.fix(a.text())
    hdr = "".join(l for l in open(f"cdna_kernels/{NAME}.s.ref").readlines() if l.startswith(";") and "@launch" not in l) if HEADER else ""
    return wrap(body, 256, 512, L_END, vgpr=244, header=hdr)


HEADER = True
if __name__ == "__main__":
    kw = {}
    out = f"cdna_kernels/{NAME}.s"
    for arg in sys.argv[1:]:
        k, v = arg.split("=")
        if k == "out": out = v
        else: kw[k] = int(v) if v.lstrip("-").isdigit() else v
    open(out, "w").write(gen(**kw))
    print("wrote", out)
```
